```python
import torch

def _softmax(x, axis=-1):
    return torch.softmax(x, dim=axis)
def _gelu(x):
    return torch.nn.functional.gelu(x, approximate="tanh")
def _silu(x):
    return torch.nn.functional.silu(x)
def _sigmoid(x):
    return torch.sigmoid(x)
def _layernorm(x, axis=-1, eps=1e-5):
    m = x.mean(dim=axis, keepdim=True)
    v = x.var(dim=axis, keepdim=True, unbiased=False)
    return (x - m) / torch.sqrt(v + eps)
def _scatter_add(tgt, idx, src, axis=0):
    return tgt.clone().index_add_(axis, idx, src)
def _segment_sum(src, seg, n):
    out = torch.zeros((n,) + src.shape[1:], dtype=src.dtype)
    return out.index_add_(0, seg, src)
def _pad(x, pw):
    flat = tuple(v for pair in reversed(pw) for v in pair)
    return torch.nn.functional.pad(x, flat)

kernel_name = 'gather_scatter__hybrid_graph_tf_nagphormer__graph'

def setup_inputs():

    _w = (lambda a: (lambda t: t.to(torch.bfloat16) if t.is_floating_point() else t)(torch.as_tensor(a)))
    N, deg, D = 25000, 32, 64
    E = N * deg
    src = (lambda lo, hi, *s: torch.randint(lo, hi, s))(0, N, E).to(torch.int64)
    dst = (lambda lo, hi, *s: torch.randint(lo, hi, s))(0, N, E).to(torch.int64)
    deg_cnt = torch.bincount(dst, minlength=N).to(float) + 1.0
    sc = 1.0 / D ** 0.5
    return {
        "x": _w((lambda *s: torch.randn(*s, dtype=torch.bfloat16) * 0.1)(N, D)),
        "src": _w(src),
        "dst": _w(dst),
        "deg_inv_sqrt": _w(1.0 / (lambda _x: torch.sqrt(torch.as_tensor(_x)))(deg_cnt)),
        "wq": _w((lambda *s: torch.randn(*s, dtype=torch.bfloat16) * 1.6)(D, D) * sc),
        "wk": _w((lambda *s: torch.randn(*s, dtype=torch.bfloat16) * 3.2)(D, D) * sc),
        "wv": _w((lambda *s: torch.randn(*s, dtype=torch.bfloat16) * 0.1)(D, D) * sc),
        "wo": _w((lambda *s: torch.randn(*s, dtype=torch.bfloat16) * 0.1)(D, D) * sc),
        "w_r": _w((lambda *s: torch.randn(*s, dtype=torch.bfloat16) * 0.1)(D)),
    }

def reference(x, src, dst, deg_inv_sqrt, wq, wk, wv, wo, w_r):
    N, D = x.shape[0], x.shape[1]
    K = 7
    h = x
    toks = [x]
    for _ in range(K):
        msg = h[src] * deg_inv_sqrt[src, None] * deg_inv_sqrt[dst, None]
        h = _segment_sum(msg, dst, N)
        toks.append(h)
    tok = torch.stack(toks, axis=1)
    t = _layernorm(tok, axis=-1)
    q   = torch.einsum('nkd,de->nke', t, wq)
    key = torch.einsum('nkd,de->nke', t, wk)
    v   = torch.einsum('nkd,de->nke', t, wv)
    scale = 1.0 / (D ** 0.5)
    attn = _softmax(torch.einsum('nkd,nld->nkl', q, key) * scale, axis=-1)
    o = torch.einsum('nkl,nld->nkd', attn, v)
    o = tok + torch.einsum('nkd,de->nke', o, wo)
    r = _layernorm(o, axis=-1)
    alpha = _softmax(torch.einsum('nkd,d->nk', r, w_r), axis=-1)
    return torch.einsum('nk,nkd->nd', alpha, o)
```

```python
class Asm:
    def __init__(self):
        self.lines = []
        self.uid = 0
    def __call__(self, s):
        for l in s.strip('\n').split('\n'):
            self.lines.append('    ' + l.strip())
    def label(self, name):
        self.lines.append(name + ':')
    def raw(self, s):
        self.lines.append(s)
    def newlabel(self, base='L'):
        self.uid += 1
        return '%s_%d' % (base, self.uid)
    def text(self):
        return '\n'.join(self.lines) + '\n'
    def kernel_begin(self, name):
        self.raw('.globl %s' % name)
        self.raw('.p2align 8')
        self.raw('.type %s,@function' % name)
        self.label(name)
    @staticmethod
    def descriptor(name, vgpr, sgpr=96, accum=None):
        acc = accum if accum is not None else ((vgpr + 3) // 4) * 4
        return f""".p2align 6
.amdhsa_kernel {name}
  .amdhsa_next_free_vgpr {vgpr}
  .amdhsa_next_free_sgpr {sgpr}
  .amdhsa_accum_offset {acc}
  .amdhsa_group_segment_fixed_size 0
  .amdhsa_kernarg_size 96
  .amdhsa_user_sgpr_count 2
  .amdhsa_user_sgpr_kernarg_segment_ptr 1
  .amdhsa_system_sgpr_workgroup_id_x 1
.end_amdhsa_kernel
"""
def vr(lo, n):
    return 'v[%d:%d]' % (lo, lo + n - 1)
def sr(lo, n):
    return 's[%d:%d]' % (lo, lo + n - 1)
```

```python
import re

def _split_ops(s):
    ops = []; depth = 0; cur = ''
    for ch in s:
        if ch in '[(': depth += 1
        if ch in '])': depth -= 1
        if ch == ',' and depth == 0:
            ops.append(cur.strip()); cur = ''
        else:
            cur += ch
    if cur.strip(): ops.append(cur.strip())
    return ops

_reg = re.compile(r'^(-|\|)?(?:abs\(|neg\()?([vsa])(\d+|\[(\d+):(\d+)\])')
def regs_of(op):
    op = op.strip()
    o = op.lstrip('-|')
    if o.startswith('abs('): o = o[4:]
    o = o.lstrip('-|')
    if o.startswith('vcc'):
        if o.startswith('vcc_lo'): return {('s', 106)}
        if o.startswith('vcc_hi'): return {('s', 107)}
        return {('s', 106), ('s', 107)}
    if o.startswith('exec'): return {('s', 126), ('s', 127)}
    if o.startswith('m0'): return {('s', 124)}
    m = re.match(r'^([vsa])\[(\d+):(\d+)\]', o)
    if m: return {(m.group(1), i) for i in range(int(m.group(2)), int(m.group(3)) + 1)}
    m = re.match(r'^([vsa])(\d+)\b', o)
    if m: return {(m.group(1), int(m.group(2)))}
    return set()

TRANS = ('v_exp_', 'v_log_', 'v_rcp_', 'v_rsq_', 'v_sqrt_', 'v_sin_', 'v_cos_')
NODST_S = ('s_cmp', 's_cbranch', 's_branch', 's_waitcnt', 's_barrier', 's_nop', 's_endpgm', 's_setprio', 's_sleep', 's_bitcmp', 's_sendmsg', 's_setreg')

class I:
    def __init__(self, text):
        self.text = text
        t = text.split(';')[0].strip()
        self.label = None; self.op = None
        self.w = set(); self.r = set(); self.kind = None
        self.ws = 1
        self.target = None
        if not t or t.startswith('.'):
            self.kind = 'dir'; self.ws = 0; return
        if t.endswith(':'):
            self.label = t[:-1]; self.kind = 'label'; self.ws = 0; return
        parts = t.split(None, 1)
        op = parts[0]; self.op = op
        rest = parts[1] if len(parts) > 1 else ''
        ops = _split_ops(rest)
        mods = ''
        if ops:
            last = ops[-1].split()
            if len(last) > 1:
                ops[-1] = last[0]; mods = ' '.join(last[1:])
        self.ops = ops; self.mods = mods
        R = [regs_of(o) for o in ops]
        allr = set().union(*R) if R else set()
        if op == 's_nop':
            self.kind = 'nop'; self.ws = int(ops[0], 0) + 1; return
        if op.startswith('s_'):
            self.kind = 'salu'
            if op.startswith('s_cbranch') or op == 's_branch':
                self.kind = 'branch'; self.target = ops[0]; return
            if op == 's_endpgm': self.kind = 'end'; return
            if op.startswith('s_load') or op.startswith('s_buffer_load') or op.startswith('s_mem'):
                self.kind = 'smem'; self.w = R[0]; self.r = set().union(*R[1:]) if len(R) > 1 else set(); return
            if op.startswith(NODST_S): self.r = allr; return
            self.w = R[0] if R else set(); self.r = set().union(*R[1:]) if len(R) > 1 else set()
            if 'saveexec' in op: self.w = self.w | regs_of('exec')
            return
        if op.startswith('v_mfma') or op.startswith('v_smfmac'):
            self.kind = 'mfma'; self.w = R[0]; self.a = R[1]; self.b = R[2]; self.c = R[3]; self.r = R[1] | R[2] | R[3]
            self.passes = 8 if '32x32' in op else 4
            return
        if op.startswith('v_'):
            self.kind = 'valu'
            self.dpp = any(k in mods for k in ('row_', 'quad_perm', 'wave_', 'row_bcast', 'row_newbcast')) or op.endswith('_dpp')
            self.trans = op.startswith(TRANS)
            self.perm = op.startswith('v_permlane')
            self.rl = op.startswith('v_readlane') or op.startswith('v_readfirstlane')
            self.dot = op.startswith('v_dot')
            if self.perm and 'swap' in op:
                self.w = R[0] | R[1]; self.r = R[0] | R[1]; return
            if '_co_' in op and not op.startswith('v_cmp'):
                self.w = R[0] | R[1]; self.r = set().union(*R[2:]); return
            self.w = R[0]; self.r = set().union(*R[1:]) if len(R) > 1 else set()
            if op.startswith('v_cmpx'): self.w = self.w | regs_of('exec')
            if op.startswith(('v_fmac', 'v_mac', 'v_dot2c', 'v_pk_fmac', 'v_writelane', 'v_dot4c')) or self.dpp or 'sdwa' in op or 'op_sel' in mods and False:
                self.r = self.r | R[0]
            if op.startswith('v_cndmask') and len(ops) == 3: self.r |= regs_of('vcc')
            if op.startswith(('v_addc', 'v_subb')) : pass
            return
        if op.startswith('ds_'):
            self.kind = 'ds'
            if op.startswith(('ds_read', 'ds_bpermute', 'ds_permute', 'ds_swizzle')) or '_rtn' in op:
                self.w = R[0]; self.r = set().union(*R[1:]) if len(R) > 1 else set()
            else:
                self.r = allr
            return
        if op.startswith(('buffer_', 'global_', 'flat_')):
            self.kind = 'vmem'
            self.lds = ' lds' in (' ' + mods)
            if 'load' in op and not self.lds:
                self.w = R[0]; self.r = set().union(*R[1:])
            elif 'atomic' in op:
                self.r = allr
                if 'sc0' in mods: self.w = R[0]
            else:
                self.r = allr
            self.wide_store = ('store' in op and ('x4' in op or 'x3' in op))
            if self.wide_store:
                self.sdata = R[0] if op.startswith('buffer_') else R[1]
            return
        raise ValueError('unknown instr: ' + text)

def need(p, c):
    n = 0
    pk, ck = p.kind, c.kind
    if pk == 'valu':
        sw = {x for x in p.w if x[0] == 's'}
        vw = {x for x in p.w if x[0] != 's'}
        if sw:
            if ck in ('valu', 'mfma') and sw & c.r:
                n = max(n, 4 if (ck == 'valu' and (c.op.startswith('v_readlane') or c.op.startswith('v_writelane'))) else 2)
            if ck == 'vmem' and sw & c.r: n = max(n, 5)
            if ck == 'valu' and c.op.startswith('v_div_fmas'): n = max(n, 4)
            if regs_of('exec') & sw:
                if ck == 'mfma': n = max(n, 4)
                if ck == 'valu': n = max(n, 5)
        if vw & c.r:
            if ck == 'valu':
                if c.dpp or c.perm: n = max(n, 2)
                if c.rl: n = max(n, 1)
                if p.trans and not c.trans: n = max(n, 1)
                if p.dot and c.op != p.op: n = max(n, 3)
                if p.dot and c.op == p.op and (vw & set().union(*[regs_of(o) for o in c.ops[1:3]])): n = max(n, 3)
                if ('op_sel' in p.mods or 'sdwa' in p.op): n = max(n, 1)
            if ck == 'mfma': n = max(n, 3 if p.dot else 2)
            if ck in ('vmem', 'ds'):
                if p.trans: n = max(n, 1)
                if p.dot: n = max(n, 3)
        if p.dot and (vw & c.w) and (ck != 'valu' or c.op != p.op): n = max(n, 3)
    if pk == 'mfma':
        big = 12 if p.passes == 8 else 8
        mid = 10 if p.passes == 8 else 6
        if ck == 'mfma':
            if p.w & (c.a | c.b): n = max(n, big)
            if p.w & c.c:
                if p.w == c.c and p.op == c.op: pass
                else: n = max(n, mid)
            if (p.w & c.w) and not (p.w & c.c): n = max(n, big)
        elif ck in ('valu', 'ds', 'vmem'):
            if p.w & (c.r | c.w): n = max(n, big)
            if ck == 'valu' and (p.c & c.w): n = max(n, 7 if p.passes == 8 else 3)
    if pk == 'salu' and ('s', 124) in p.w:
        if ck == 'vmem' and c.lds: n = max(n, 1)
        if ck == 'salu' and 'movrel' in c.op: n = max(n, 1)
    if pk == 'vmem' and getattr(p, 'wide_store', False):
        if p.sdata & c.w: n = max(n, 2)
    return n

def fix(lines, verbose=False):
    ins = [I(l) for l in lines]
    nops_before = [0] * len(ins)
    label_pos = {x.label: i for i, x in enumerate(ins) if x.kind == 'label'}
    srcs = {}
    for i, x in enumerate(ins):
        if x.kind == 'branch': srcs.setdefault(x.target, []).append(i)
    W = 21
    def walk(i, dist, c, seen):
        worst = 0
        j = i - 1
        d = dist + nops_before[i]
        while j >= 0 and d < W:
            x = ins[j]
            if x.kind == 'label':
                for s in srcs.get(x.label, []):
                    key = (s, d)
                    if key in seen: continue
                    seen.add(key)
                    worst = max(worst, walk(s, d + 1, c, seen))
            elif x.kind == 'dir':
                pass
            elif x.kind == 'end' or (x.kind == 'branch' and x.op == 's_branch'):
                break
            else:
                r = need(x, c) if x.kind not in ('nop', 'branch') else 0
                if r > d: worst = max(worst, r - d)
                d += x.ws
            d += nops_before[j]
            j -= 1
        return worst
    for i, c in enumerate(ins):
        if c.kind in ('label', 'dir', 'nop', 'branch', 'end'): continue
        e = walk(i, 0, c, set())
        if e > 0:
            nops_before[i] = e
    out = []
    for i, x in enumerate(ins):
        n = nops_before[i]
        while n > 0:
            k = min(n, 16)
            out.append('    s_nop %d' % (k - 1)); n -= k
        out.append(x.text)
    return out
```

```python
import sys
from asmlib import *
from hazard import fix

N = 25000
E = 800000
NB_ = 250
BN = 100
CH = 3200
TBL = N * 128

MB = 1 << 20
PART_OFF = 0
SEG_OFF = 4 * MB
LIST_OFF = 5 * MB
LIST_STRIDE = 16384
HDR_OFF = 10 * MB
HDR_STRIDE = 1024
W_OFF = 12 * MB
G_OFF = lambda k: 16 * MB + k * 4 * MB
H_OFF = lambda k: 48 * MB + k * 4 * MB
WS_USED = 96 * MB

NWV = 13

def srd(a, d, base_lo, base_hi, nbytes, off=0):
    if off:
        a(f"s_add_u32 s{d}, s{base_lo}, {off}")
        a(f"s_addc_u32 s{d+1}, s{base_hi}, 0")
    else:
        a(f"s_mov_b32 s{d}, s{base_lo}")
        a(f"s_mov_b32 s{d+1}, s{base_hi}")
    a(f"s_mov_b32 s{d+2}, {nbytes}")
    a(f"s_mov_b32 s{d+3}, 0x20000")

def gen_k1(a):
    name = 'k1_kernel'
    CNT = 0; OFFS = 1024; SORT = 2048
    a.kernel_begin(name)
    a(f"""
    s_cmp_ge_u32 s2, {NB_}
    s_cbranch_scc1 {name}_end
    s_load_dwordx4 s[4:7], s[0:1], 0
    s_load_dwordx4 s[8:11], s[0:1], 16
    s_load_dwordx2 s[12:13], s[0:1], 88
    v_lshlrev_b32 v1, 4, v0                 ; tid*16
    s_mul_i32 s3, s2, 12800
    v_add_u32 v2, s3, v1                    ; voff
    s_mul_i32 s14, s2, 200
    v_lshrrev_b32 v3, 3, v0
    v_lshlrev_b32 v3, 1, v3
    v_add_u32 v3, s14, v3
    v_lshlrev_b32 v17, 2, v0                ; tid*4
    v_mov_b32 v18, 0
    v_cmp_gt_u32 vcc, 256, v0
    s_mov_b64 s[40:41], vcc
    v_cmp_gt_u32 vcc, 800, v0
    s_mov_b64 s[42:43], vcc
    s_mov_b64 exec, s[40:41]
    ds_write_b32 v17, v18 offset:{CNT}
    s_mov_b64 exec, s[42:43]
    s_waitcnt lgkmcnt(0)
    """)
    srd(a, 16, 4, 5, TBL)
    srd(a, 20, 6, 7, E * 4)
    srd(a, 24, 8, 9, E * 4)
    srd(a, 28, 10, 11, N * 2)
    srd(a, 32, 12, 13, WS_USED)
    a(f"""
    buffer_load_dwordx4 v[4:7], v2, s[24:27], 0 offen
    buffer_load_dwordx4 v[8:11], v2, s[20:23], 0 offen
    buffer_load_dwordx4 v[12:15], v2, s[16:19], 0 offen
    buffer_load_ushort v16, v3, s[28:31], 0 offen
    s_barrier
    v_mov_b32 v19, 1
    s_waitcnt vmcnt(3)
    """)
    for i in range(4):
        a(f"""
        v_mul_u32_u24 v{20+i}, 5243, v{4+i}
        v_lshrrev_b32 v{20+i}, 19, v{20+i}          ; bucket
        v_mul_u32_u24 v{24+i}, 100, v{20+i}
        v_sub_u32 v{24+i}, v{4+i}, v{24+i}          ; local
        v_lshlrev_b32 v{20+i}, 2, v{20+i}           ; bucket*4
        ds_add_rtn_u32 v{28+i}, v{20+i}, v19 offset:{CNT}
        """)
    a("s_waitcnt vmcnt(2)")
    for i in range(4):
        a(f"v_lshl_or_b32 v{24+i}, v{24+i}, 16, v{8+i}")
        a(f"v_or_b32 v{24+i}, 0x80000000, v{24+i}")
    a(f"""
    s_waitcnt vmcnt(0)
    s_mov_b32 s36, {H_OFF(0)}
    s_mov_b32 s37, {G_OFF(0)}
    buffer_store_dwordx4 v[12:15], v2, s[32:35], s36 offen
    v_lshlrev_b32 v16, 16, v16
    """)
    for i in range(4):
        a(f"""
        v_lshlrev_b32 v32, 16, v{12+i}
        v_and_b32 v33, 0xffff0000, v{12+i}
        v_mul_f32 v32, v32, v16
        v_mul_f32 v33, v33, v16
        v_cvt_pk_bf16_f32 v{36+i}, v32, v33
        """)
    a(f"""
    buffer_store_dwordx4 v[36:39], v2, s[32:35], s37 offen
    s_mov_b64 exec, -1
    s_waitcnt lgkmcnt(0)
    s_barrier
    v_cmp_gt_u32 vcc, 64, v0
    s_cbranch_vccz {name}_noscan
    ds_read_b128 v[40:43], v1 offset:{CNT}
    s_waitcnt lgkmcnt(0)
    v_add_u32 v45, v40, v41                 ; e2
    v_add_u32 v46, v45, v42                 ; e3
    v_add_u32 v47, v46, v43                 ; tot
    v_mov_b32 v48, v47
    v_add_u32_dpp v48, v48, v48 row_shr:1 row_mask:0xf bank_mask:0xf
    v_add_u32_dpp v48, v48, v48 row_shr:2 row_mask:0xf bank_mask:0xf
    v_add_u32_dpp v48, v48, v48 row_shr:4 row_mask:0xf bank_mask:0xf
    v_add_u32_dpp v48, v48, v48 row_shr:8 row_mask:0xf bank_mask:0xf
    v_add_u32_dpp v48, v48, v48 row_bcast:15 row_mask:0xa bank_mask:0xf
    v_add_u32_dpp v48, v48, v48 row_bcast:31 row_mask:0xc bank_mask:0xf
    v_sub_u32 v48, v48, v47                 ; exclusive
    v_mov_b32 v52, v48
    v_add_u32 v53, v48, v40
    v_add_u32 v54, v48, v45
    v_add_u32 v55, v48, v46
    ds_write_b128 v1, v[52:55] offset:{OFFS}
    v_lshl_or_b32 v56, v40, 16, v52
    v_lshl_or_b32 v57, v41, 16, v53
    v_lshl_or_b32 v58, v42, 16, v54
    v_lshl_or_b32 v59, v43, 16, v55
    s_lshl_b32 s38, s2, 10
    s_add_u32 s38, s38, {SEG_OFF}
    buffer_store_dwordx4 v[56:59], v1, s[32:35], s38 offen
    s_waitcnt lgkmcnt(0)
    """)
    a.label(f"{name}_noscan")
    a(f"""
    s_barrier
    s_mov_b64 exec, s[42:43]
    """)
    for i in range(4):
        a(f"ds_read_b32 v{40+i}, v{20+i} offset:{OFFS}")
    a("s_waitcnt lgkmcnt(0)")
    for i in range(4):
        a(f"""
        v_add_u32 v{40+i}, v{40+i}, v{28+i}
        v_lshlrev_b32 v{40+i}, 2, v{40+i}
        ds_write_b32 v{40+i}, v{24+i} offset:{SORT}
        """)
    a(f"""
    s_mov_b64 exec, -1
    s_waitcnt lgkmcnt(0)
    s_barrier
    s_mov_b64 exec, s[42:43]
    ds_read_b128 v[44:47], v1 offset:{SORT}
    s_waitcnt lgkmcnt(0)
    buffer_store_dwordx4 v[44:47], v2, s[32:35], 0 offen
    """)
    a.label(f"{name}_end")
    a("s_endpgm")
    return dict(name=name, grid=NB_, block=832, lds=SORT + CH * 4, vgpr=64, sgpr=48)

class HR:
    lane = 0
    c16 = 1
    k128 = 2
    lidx = 3
    hdr = 4
    A = 8
    acc = 12
    sv = 16
    idxI = 20
    idxN = 24
    addr = 28
    land = 32
    tmp = 64
    NV = 96

def hop_consts(a):
    R = HR
    a(f"""
    v_and_b32 v{R.c16}, 7, v{R.lane}
    v_lshlrev_b32 v{R.c16}, 4, v{R.c16}
    v_mov_b32 v{R.k128}, 128
    v_and_b32 v{R.tmp}, 7, v{R.lane}              ; jj = m&7
    v_and_b32 v{R.tmp+1}, 1, v{R.tmp}
    v_lshlrev_b32 v{R.tmp+1}, 4, v{R.tmp+1}       ; 16*(jj&1)
    v_mov_b32 v{R.tmp+2}, 0x3f80
    v_lshlrev_b32 v{R.tmp+2}, v{R.tmp+1}, v{R.tmp+2}   ; value
    v_lshrrev_b32 v{R.tmp+1}, 1, v{R.tmp}         ; q = jj>>1
    v_bfe_u32 v{R.tmp+3}, v{R.lane}, 3, 1         ; m>>3
    v_lshrrev_b32 v{R.tmp+4}, 5, v{R.lane}        ; g>>1
    v_cmp_eq_u32 vcc, v{R.tmp+3}, v{R.tmp+4}
    v_cndmask_b32 v{R.tmp+2}, 0, v{R.tmp+2}, vcc
    """)
    for q in range(4):
        a(f"""
        v_cmp_eq_u32 vcc, {q}, v{R.tmp+1}
        v_cndmask_b32 v{R.A+q}, 0, v{R.tmp+2}, vcc
        """)

def hop_loop(a, name, sPad, sNB, sCnt, sGin, ldflags=''):
    R = HR
    for r in range(4):
        a(f"v_mov_b32 v{R.acc+r}, 0")
        a(f"v_mov_b32 v{R.sv+r}, 0")
    a(f"""
    s_cmp_eq_u32 s{sNB}, 0
    s_cbranch_scc1 {name}_done
    ds_read_b128 {vr(R.idxI,4)}, v{R.lidx}
    ds_read_b128 {vr(R.idxN,4)}, v{R.lidx} offset:128
    s_waitcnt lgkmcnt(0)
    """)
    def gather(j):
        ad = R.addr + (j & 1)
        a(f"v_mad_u32_u16 v{ad}, v{R.idxI+(j>>1)}, v{R.k128}, v{R.c16} op_sel:[{j&1},0,0,0]")
        a(f"buffer_load_dwordx4 {vr(R.land+4*j,4)}, v{ad}, {sr(sGin,4)}, 0 offen {ldflags}")
    for j in range(8):
        a(f"""
        s_cmp_gt_u32 s{sPad}, {j}
        s_cbranch_scc1 {name}_pz{j}
        """)
        gather(j)
        a(f"s_branch {name}_pn{j}")
        a.label(f"{name}_pz{j}")
        for r in range(4):
            a(f"v_mov_b32 v{R.land+4*j+r}, 0")
        a.label(f"{name}_pn{j}")
    a(f"""
    s_sub_u32 s{sNB}, s{sNB}, 1
    s_cmp_eq_u32 s{sNB}, 0
    s_cbranch_scc1 {name}_last
    """)
    stubs = []
    def consume(j, tag, cnt):
        a(f"s_waitcnt vmcnt({cnt})")
        a(f"v_mfma_f32_16x16x32_bf16 {vr(R.acc,4)}, {vr(R.A,4)}, {vr(R.land+4*j,4)}, {vr(R.acc,4)}")
        a(f"s_sub_u32 s{sCnt}, s{sCnt}, 1")
        a(f"s_cbranch_scc1 {name}_st{tag}{j}")
        a.label(f"{name}_ct{tag}{j}")
        stubs.append((tag, j))
    a.label(f"{name}_loop")
    a("s_waitcnt lgkmcnt(0)")
    for r in range(4):
        a(f"v_mov_b32 v{R.idxI+r}, v{R.idxN+r}")
    a(f"ds_read_b128 {vr(R.idxN,4)}, v{R.lidx} offset:256")
    a(f"v_add_u32 v{R.lidx}, 128, v{R.lidx}")
    for j in range(8):
        consume(j, 'a', 7)
        gather(j)
    a(f"""
    s_sub_u32 s{sNB}, s{sNB}, 1
    s_cmp_lg_u32 s{sNB}, 0
    s_cbranch_scc1 {name}_loop
    """)
    a.label(f"{name}_last")
    for j in range(8):
        consume(j, 'b', 7 - j)
    a(f"s_branch {name}_done")
    for tag, j in stubs:
        a.label(f"{name}_st{tag}{j}")
        for r in range(4):
            a(f"v_mov_b32 v{R.sv+r}, v{R.acc+r}")
        for r in range(4):
            a(f"v_mov_b32 v{R.acc+r}, 0")
        a(f"s_branch {name}_ct{tag}{j}")
    a.label(f"{name}_done")
    a("s_waitcnt lgkmcnt(0)")

def hop_epilogue(a, sH, sG, stflags=''):
    R = HR
    T = R.tmp
    dP, dQ = T, T + 1
    X = T + 2
    Hh = T + 12
    Gg = T + 16
    ad = T + 10
    a(f"""
    s_waitcnt vmcnt(0)
    v_and_b32 v{dP}, 0xffff0000, v{R.hdr}
    v_and_b32 v{dQ}, 0xffff0000, v{R.hdr+1}
    """)
    for r in range(4):
        a(f"v_mul_f32 v{X+r}, v{R.sv+r}, v{dP}")
    for r in range(4):
        a(f"v_mul_f32 v{X+4+r}, v{R.acc+r}, v{dQ}")
    a(f"""
    v_cvt_pk_bf16_f32 v{Hh}, v{X}, v{X+1}
    v_cvt_pk_bf16_f32 v{Hh+1}, v{X+2}, v{X+3}
    v_cvt_pk_bf16_f32 v{Hh+2}, v{X+4}, v{X+5}
    v_cvt_pk_bf16_f32 v{Hh+3}, v{X+6}, v{X+7}
    """)
    if sG is not None:
        for r in range(4):
            a(f"v_mul_f32 v{X+r}, v{X+r}, v{dP}")
        for r in range(4):
            a(f"v_mul_f32 v{X+4+r}, v{X+4+r}, v{dQ}")
        a(f"""
        v_cvt_pk_bf16_f32 v{Gg}, v{X}, v{X+1}
        v_cvt_pk_bf16_f32 v{Gg+1}, v{X+2}, v{X+3}
        v_cvt_pk_bf16_f32 v{Gg+2}, v{X+4}, v{X+5}
        v_cvt_pk_bf16_f32 v{Gg+3}, v{X+6}, v{X+7}
        """)
    a(f"""
    v_bfe_u32 v{ad+1}, v{R.lane}, 4, 1
    v_cmp_eq_u32 vcc, 1, v{ad+1}
    v_cndmask_b32 v{ad}, v{R.hdr}, v{R.hdr+1}, vcc
    v_mad_u32_u16 v{ad}, v{ad}, v{R.k128}, v{R.c16} op_sel:[0,0,0,0]
    v_permlane16_swap_b32 v{Hh}, v{Hh+2}
    v_permlane16_swap_b32 v{Hh+1}, v{Hh+3}
    buffer_store_dwordx4 {vr(Hh,4)}, v{ad}, {sr(sH,4)}, 0 offen {stflags}
    """)
    if sG is not None:
        a(f"""
        v_permlane16_swap_b32 v{Gg}, v{Gg+2}
        v_permlane16_swap_b32 v{Gg+1}, v{Gg+3}
        buffer_store_dwordx4 {vr(Gg,4)}, v{ad}, {sr(sG,4)}, 0 offen {stflags}
        """)

def slow_hop(a, name, nthreads, ACC, sB100, sSrc, sDst, sGin, vtid, sW):
    R = HR
    T = R.tmp
    a(f"""
    v_lshlrev_b32 v{T}, 4, v{vtid}
    v_mov_b32 v{T+4}, 0
    v_mov_b32 v{T+5}, 0
    v_mov_b32 v{T+6}, 0
    v_mov_b32 v{T+7}, 0
    """)
    for o in range(0, 25 * 1024, nthreads * 16):
        lim = min(nthreads, (25 * 1024 - o) // 16)
        a(f"""
        v_cmp_gt_u32 vcc, {lim}, v{vtid}
        s_and_saveexec_b64 s[60:61], vcc
        ds_write_b128 v{T}, {vr(T+4,4)} offset:{ACC + o}
        s_mov_b64 exec, s[60:61]
        """)
    a(f"""
    s_waitcnt lgkmcnt(0)
    s_barrier
    v_lshlrev_b32 v{T}, 2, v{vtid}
    s_mov_b32 s62, 0
    """)
    a.label(f"{name}_sl_loop")
    a(f"""
    buffer_load_dword v{T+1}, v{T}, {sr(sDst,4)}, s62 offen
    buffer_load_dword v{T+2}, v{T}, {sr(sSrc,4)}, s62 offen
    v_add_u32 v{T+3}, s62, v{T}
    s_waitcnt vmcnt(0)
    v_subrev_u32 v{T+1}, s{sB100}, v{T+1}           ; rel
    v_cmp_gt_u32 vcc, 100, v{T+1}
    s_mov_b64 s[64:65], vcc
    v_cmp_gt_u32 vcc, {E*4}, v{T+3}
    s_and_b64 vcc, vcc, s[64:65]
    s_and_saveexec_b64 s[60:61], vcc
    s_cbranch_execz {name}_sl_next
    v_lshrrev_b32 v{T+4}, 2, v{T+1}
    v_lshlrev_b32 v{T+4}, 10, v{T+4}
    v_bfe_u32 v{T+5}, v{T+1}, 1, 1
    v_lshl_add_u32 v{T+4}, v{T+5}, 9, v{T+4}
    v_and_b32 v{T+5}, 1, v{T+1}
    v_lshl_add_u32 v{T+4}, v{T+5}, 7, v{T+4}
    v_lshlrev_b32 v{T+2}, 7, v{T+2}                 ; src*128
    """)
    for ch in range(8):
        a(f"buffer_load_dwordx4 {vr(R.land+4*ch,4)}, v{T+2}, {sr(sGin,4)}, 0 offen offset:{ch*16}")
    a("s_waitcnt vmcnt(0)")
    for ch in range(8):
        for d in range(4):
            hb = d >> 1
            off = ACC + (16 * hb + ch) * 16
            a(f"""
            v_lshlrev_b32 v{T+6}, 16, v{R.land+4*ch+d}
            v_and_b32 v{T+7}, 0xffff0000, v{R.land+4*ch+d}
            ds_add_f32 v{T+4}, v{T+6} offset:{off + ((2*d)&3)*4}
            ds_add_f32 v{T+4}, v{T+7} offset:{off + ((2*d+1)&3)*4}
            """)
    a.label(f"{name}_sl_next")
    a(f"""
    s_mov_b64 exec, s[60:61]
    s_add_u32 s62, s62, {nthreads*4}
    s_cmp_lt_u32 s62, {E*4}
    s_cbranch_scc1 {name}_sl_loop
    s_waitcnt lgkmcnt(0)
    s_barrier
    s_cmp_ge_u32 s{sW}, {NWV}
    s_cbranch_scc1 {name}_sl_done
    v_lshlrev_b32 v{T}, 4, v{R.lane}
    s_lshl_b32 s62, s{sW}, 10
    v_add_u32 v{T+1}, s62, v{T}
    ds_read_b128 {vr(R.sv,4)}, v{T+1} offset:{ACC}
    s_sub_u32 s62, 25, s{sW}
    s_lshl_b32 s62, s62, 10
    v_add_u32 v{T+1}, s62, v{T}
    ds_read_b128 {vr(R.acc,4)}, v{T+1} offset:{ACC}
    s_waitcnt lgkmcnt(0)
    """)
    a.label(f"{name}_sl_done")

L_DEG = 0; L_RANK = 512; L_SDEG = 1024; L_NINFO = 1536; L_FLAG = 2048
L_HDR = 2560
L_LIST = 4096
L_ACC = 4096 + 13312
K2_LDS = L_ACC + 26 * 1024

def hdr_lane_addr(a, vdst, vt, sW):
    a(f"""
    v_lshrrev_b32 v{vdst}, 5, v{HR.lane}
    v_bfe_u32 v{vt}, v{HR.lane}, 3, 1
    v_lshl_add_u32 v{vdst}, v{vdst}, 1, v{vt}
    v_lshlrev_b32 v{vdst}, 3, v{vdst}
    s_lshl_b32 s63, s{sW}, 6
    v_add_u32 v{vdst}, s63, v{vdst}
    """)

def gen_k2(a):
    name = 'k2_kernel'
    R = HR
    TID = 96; J = 97; SP = 98; DG = 99
    EE = 100
    RK = 112
    DISV = 124; ONE = 125
    T = 64
    sW = 3
    a.kernel_begin(name)
    a(f"""
    s_cmp_gt_u32 s2, {NB_}
    s_cbranch_scc1 {name}_end
    s_cmp_eq_u32 s2, {NB_}
    s_cbranch_scc1 {name}_prep
    s_load_dwordx4 s[4:7], s[0:1], 8
    s_load_dwordx2 s[8:9], s[0:1], 24
    s_load_dwordx2 s[10:11], s[0:1], 88
    v_mov_b32 v{TID}, v0
    v_and_b32 v0, 63, v0
    v_lshrrev_b32 v{T}, 6, v{TID}
    v_readfirstlane_b32 s{sW}, v{T}
    v_lshlrev_b32 v{T}, 2, v{TID}
    v_mov_b32 v{T+4}, 0
    v_cmp_gt_u32 vcc, 128, v{TID}
    s_and_saveexec_b64 s[60:61], vcc
    ds_write_b32 v{T}, v{T+4} offset:{L_DEG}
    ds_write_b32 v{T}, v{T+4} offset:{L_RANK}
    ds_write_b32 v{T}, v{T+4} offset:{L_FLAG}
    s_mov_b64 exec, s[60:61]
    v_mov_b32 v{T+4}, -1
    v_mov_b32 v{T+5}, -1
    v_mov_b32 v{T+6}, -1
    v_mov_b32 v{T+7}, -1
    v_lshlrev_b32 v{T+1}, 4, v{TID}
    v_cmp_gt_u32 vcc, 832, v{TID}
    s_and_saveexec_b64 s[60:61], vcc
    ds_write_b128 v{T+1}, {vr(T+4,4)} offset:{L_LIST}
    s_mov_b64 exec, s[60:61]
    v_and_b32 v{J}, 15, v{TID}
    v_lshrrev_b32 v{T+2}, 4, v{TID}          ; grp
    v_lshlrev_b32 v{T+3}, 10, v{T+2}         ; grp*1024
    s_lshl_b32 s44, s2, 2
    v_add_u32 v{T+3}, s44, v{T+3}            ; + b*4
    s_mul_i32 s45, s2, 100                   ; b*100
    v_add_u32 v{T+8}, s45, v{TID}
    v_lshlrev_b32 v{T+8}, 1, v{T+8}
    v_mov_b32 v{ONE}, 1
    s_waitcnt lgkmcnt(0)
    """)
    srd(a, 12, 10, 11, WS_USED)
    srd(a, 16, 10, 11, NB_ * 1024, SEG_OFF)
    srd(a, 20, 8, 9, N * 2)
    srd(a, 24, 4, 5, E * 4)
    srd(a, 28, 6, 7, E * 4)
    srd(a, 32, 10, 11, TBL, G_OFF(0))
    srd(a, 36, 10, 11, TBL, H_OFF(1))
    srd(a, 40, 10, 11, TBL, G_OFF(1))
    for i in range(4):
        a(f"s_mov_b32 s46, {i*65536}")
        a(f"buffer_load_dword v{T+10+i}, v{T+3}, s[16:19], s46 offen")
    a(f"buffer_load_ushort v{DISV}, v{T+8}, s[20:23], 0 offen")
    for k in range(12):
        a(f"v_mov_b32 v{EE+k}, 0")
    a(f"""
    s_barrier
    v_mul_u32_u24 v{T+4}, 12800, v{T+2}      ; grp*12800
    v_lshl_add_u32 v{T+4}, v{J}, 2, v{T+4}   ; + j*4
    v_mov_b32 v{T+9}, 0x7ffffff0
    s_waitcnt vmcnt(1)
    """)
    for i in range(4):
        sg = T + 10 + i
        a(f"""
        v_and_b32 v{T+14}, 0xffff, v{sg}                 ; start
        v_lshrrev_b32 v{T+15}, 16, v{sg}                 ; cnt
        v_lshl_add_u32 v{T+14}, v{T+14}, 2, v{T+4}       ; base
        v_add_u32 v{T+14}, {i*64*12800}, v{T+14}
        v_sub_u32 v{T+16}, v{T+15}, v{J}
        """)
        for p in range(3):
            lab = a.newlabel(name + '_ls')
            a(f"""
            v_cmp_lt_i32 vcc, {16*p}, v{T+16}
            s_cbranch_vccz {lab}
            v_cndmask_b32 v{T+17}, v{T+9}, v{T+14}, vcc
            buffer_load_dword v{EE+i*3+p}, v{T+17}, s[12:15], 0 offen offset:{64*p}
            """)
            a.label(lab)
        lab = a.newlabel(name + '_ov')
        a(f"""
        v_cmp_lt_u32 vcc, 48, v{T+15}
        s_cbranch_vccz {lab}
        s_and_saveexec_b64 s[60:61], vcc
        v_mov_b32 v{T+17}, {L_FLAG}
        ds_write_b32 v{T+17}, v{ONE}
        s_mov_b64 exec, s[60:61]
        """)
        a.label(lab)
    a("s_waitcnt vmcnt(0)")
    for k in range(12):
        lab = a.newlabel(name + '_rk')
        a(f"""
        v_cmp_gt_i32 vcc, 0, v{EE+k}
        s_cbranch_vccz {lab}
        s_and_saveexec_b64 s[60:61], vcc
        v_bfe_u32 v{T+17}, v{EE+k}, 16, 7
        v_lshlrev_b32 v{T+17}, 2, v{T+17}
        ds_add_rtn_u32 v{RK+k}, v{T+17}, v{ONE} offset:{L_DEG}
        s_mov_b64 exec, s[60:61]
        """)
        a.label(lab)
    a(f"""
    s_waitcnt lgkmcnt(0)
    s_barrier
    v_and_b32 v{T}, 127, v{TID}                ; i
    v_lshlrev_b32 v{T+1}, 2, v{T}
    ds_read_b32 v{DG}, v{T+1} offset:{L_DEG}
    s_lshr_b32 s46, s{sW}, 1                   ; p
    s_lshl_b32 s47, s46, 6                     ; p*64 bytes
    v_mov_b32 v{T+2}, s47
    """)
    for q in range(4):
        a(f"ds_read_b128 {vr(T+4+4*q,4)}, v{T+2} offset:{L_DEG + 16*q}")
    a(f"""
    s_lshl_b32 s47, s46, 4                     ; 16p
    s_waitcnt lgkmcnt(0)
    v_lshlrev_b32 v{T+3}, 7, v{DG}
    v_sub_u32 v{T+3}, v{T+3}, v{T}
    v_add_u32 v{T+3}, s47, v{T+3}
    v_mov_b32 v{T+20}, 0
    """)
    for u in range(16):
        a(f"""
        v_lshl_add_u32 v{T+21}, v{T+4+u}, 7, {-u}
        v_cmp_gt_i32 vcc, v{T+21}, v{T+3}
        v_addc_co_u32 v{T+20}, vcc, 0, v{T+20}, vcc
        """)
    a(f"""
    ds_add_u32 v{T+1}, v{T+20} offset:{L_RANK}
    s_waitcnt lgkmcnt(0)
    s_barrier
    v_cmp_gt_u32 vcc, 100, v{TID}
    s_mov_b64 s[48:49], vcc
    s_mov_b64 exec, s[48:49]
    ds_read_b32 v{SP}, v{T+1} offset:{L_RANK}
    s_waitcnt lgkmcnt(0)
    v_lshlrev_b32 v{T+2}, 2, v{SP}
    ds_write_b32 v{T+2}, v{DG} offset:{L_SDEG}
    s_mov_b64 exec, -1
    s_waitcnt lgkmcnt(0)
    s_barrier
    """)

    def header_build(slow):
        q = T; u = T + 1; w = T + 2; isq = T + 3; dP = T + 4; dQ = T + 5; t1 = T + 6; t2 = T + 7; nb = T + 8; pad = T + 9; bs = T + 10; tt = T + 11
        a(f"""
        v_lshrrev_b32 v{q}, 2, v{SP}
        v_and_b32 v{u}, 3, v{SP}
        v_sub_u32 v{t1}, 25, v{q}
        v_cmp_lt_u32 vcc, 12, v{q}
        v_cndmask_b32 v{w}, v{q}, v{t1}, vcc
        v_cndmask_b32 v{isq}, 0, v{ONE}, vcc
        """)
        if not slow:
            a(f"""
            v_lshlrev_b32 v{t1}, 4, v{w}
            ds_read_b32 v{dP}, v{t1} offset:{L_SDEG}
            v_sub_u32 v{t2}, 400, v{t1}                    ; 4*(25-w)*4 = 400 - 16w
            ds_read_b32 v{dQ}, v{t2} offset:{L_SDEG}
            s_waitcnt lgkmcnt(0)
            v_cmp_eq_u32 vcc, 0, v{w}
            v_cndmask_b32 v{dQ}, v{dQ}, 0, vcc
            v_add_u32 v{dP}, 1, v{dP}
            v_lshrrev_b32 v{dP}, 1, v{dP}                  ; sP
            v_add_u32 v{dQ}, 1, v{dQ}
            v_lshrrev_b32 v{dQ}, 1, v{dQ}                  ; sQ
            v_add_u32 v{tt}, v{dP}, v{dQ}                  ; T
            v_add_u32 v{nb}, 7, v{tt}
            v_lshrrev_b32 v{nb}, 3, v{nb}                  ; NB
            v_lshlrev_b32 v{pad}, 3, v{nb}
            v_sub_u32 v{pad}, v{pad}, v{tt}                ; pad
            v_mul_u32_u24 v{bs}, v{isq}, v{dP}
            v_add_u32 v{bs}, v{bs}, v{pad}
            v_lshrrev_b32 v{t1}, 1, v{u}
            v_lshlrev_b32 v{t1}, 6, v{t1}
            v_and_b32 v{t2}, 1, v{u}
            v_lshl_add_u32 v{t1}, v{t2}, 4, v{t1}
            v_lshl_add_u32 v{t1}, v{w}, 10, v{t1}
            v_lshl_or_b32 v{t1}, v{bs}, 16, v{t1}
            v_lshlrev_b32 v{t2}, 2, v{TID}
            ds_write_b32 v{t2}, v{t1} offset:{L_NINFO}
            v_cmp_lt_u32 vcc, 64, v{tt}
            s_and_saveexec_b64 s[60:61], vcc
            v_mov_b32 v{t1}, {L_FLAG}
            ds_write_b32 v{t1}, v{ONE}
            s_mov_b64 exec, s[60:61]
            """)
        a(f"""
        v_add_u32 v{t1}, s45, v{TID}
        v_lshl_or_b32 v{t1}, v{DISV}, 16, v{t1}
        v_lshlrev_b32 v{t2}, 6, v{w}
        v_lshl_add_u32 v{t2}, v{u}, 3, v{t2}
        v_lshl_add_u32 v{T+12}, v{isq}, 2, v{t2}
        ds_write_b32 v{T+12}, v{t1} offset:{L_HDR}
        v_cmp_eq_u32 vcc, 0, v{q}
        s_and_saveexec_b64 s[60:61], vcc
        v_mov_b32 v{t1}, 0xffff
        ds_write_b32 v{t2}, v{t1} offset:{L_HDR+4}
        s_mov_b64 exec, s[60:61]
        v_or_b32 v{t1}, v{u}, v{isq}
        v_cmp_eq_u32 vcc, 0, v{t1}
        s_and_saveexec_b64 s[60:61], vcc
        """)
        M = T + 16
        if not slow:
            a(f"""
            v_add_u32 v{M}, v{pad}, v{dP}
            v_add_u32 v{M}, -1, v{M}
            v_mov_b32 v{M+1}, v{nb}
            v_mov_b32 v{M+2}, v{pad}
            v_mov_b32 v{M+3}, 0
            """)
        else:
            a(f"""
            v_mov_b32 v{M}, 0
            v_mov_b32 v{M+1}, 0
            v_mov_b32 v{M+2}, 0
            v_mov_b32 v{M+3}, 1
            """)
        a(f"""
        ds_write_b128 v{t2}, {vr(M,4)} offset:{L_HDR+32}
        s_mov_b64 exec, s[60:61]
        """)

    a("s_mov_b64 exec, s[48:49]")
    header_build(False)
    a(f"""
    s_mov_b64 exec, -1
    s_waitcnt lgkmcnt(0)
    s_barrier                                  ; D
    v_mov_b32 v{T}, {L_FLAG}
    ds_read_b32 v{T+1}, v{T}
    s_waitcnt lgkmcnt(0)
    v_readfirstlane_b32 s50, v{T+1}
    s_cmp_lg_u32 s50, 0
    s_cbranch_scc1 {name}_slowsetup
    """)
    for k in range(12):
        lab = a.newlabel(name + '_sc')
        a(f"""
        v_cmp_gt_i32 vcc, 0, v{EE+k}
        s_cbranch_vccz {lab}
        s_and_saveexec_b64 s[60:61], vcc
        v_bfe_u32 v{T+17}, v{EE+k}, 16, 7
        v_lshlrev_b32 v{T+17}, 2, v{T+17}
        ds_read_b32 v{T+18}, v{T+17} offset:{L_NINFO}
        v_lshrrev_b32 v{T+19}, 1, v{RK+k}               ; r>>1
        v_and_b32 v{T+20}, 1, v{RK+k}                   ; r&1
        s_waitcnt lgkmcnt(0)
        v_lshrrev_b32 v{T+21}, 16, v{T+18}              ; bs
        v_add_u32 v{T+19}, v{T+19}, v{T+21}             ; k
        v_and_b32 v{T+18}, 0xffff, v{T+18}              ; base
        v_lshl_add_u32 v{T+18}, v{T+20}, 5, v{T+18}
        v_lshrrev_b32 v{T+21}, 3, v{T+19}
        v_lshl_add_u32 v{T+18}, v{T+21}, 7, v{T+18}
        v_and_b32 v{T+19}, 7, v{T+19}
        v_lshl_add_u32 v{T+18}, v{T+19}, 1, v{T+18}
        ds_write_b16 v{T+18}, v{EE+k} offset:{L_LIST}
        s_mov_b64 exec, s[60:61]
        """)
        a.label(lab)
    a(f"s_branch {name}_built")
    a.label(f"{name}_slowsetup")
    a(f"""
    s_mov_b64 exec, s[48:49]
    v_mov_b32 v{SP}, v{TID}
    """)
    header_build(True)
    a("s_mov_b64 exec, -1")
    a.label(f"{name}_built")
    a(f"""
    s_waitcnt lgkmcnt(0)
    s_barrier                                  ; E
    v_lshlrev_b32 v{T}, 4, v{TID}
    v_cmp_gt_u32 vcc, 832, v{TID}
    s_and_saveexec_b64 s[60:61], vcc
    ds_read_b128 {vr(T+4,4)}, v{T} offset:{L_LIST}
    s_mul_i32 s46, s2, {LIST_STRIDE}
    s_add_u32 s46, s46, {LIST_OFF}
    s_waitcnt lgkmcnt(0)
    buffer_store_dwordx4 {vr(T+4,4)}, v{T}, s[12:15], s46 offen
    s_mov_b64 exec, s[60:61]
    v_cmp_gt_u32 vcc, 52, v{TID}
    s_and_saveexec_b64 s[60:61], vcc
    s_cbranch_execz {name}_nohdr
    ds_read_b128 {vr(T+8,4)}, v{T} offset:{L_HDR}
    s_mul_i32 s46, s2, {HDR_STRIDE}
    s_add_u32 s46, s46, {HDR_OFF}
    s_waitcnt lgkmcnt(0)
    buffer_store_dwordx4 {vr(T+8,4)}, v{T}, s[12:15], s46 offen
    """)
    a.label(f"{name}_nohdr")
    a("s_mov_b64 exec, s[60:61]")
    hop_consts(a)
    a(f"""
    s_cmp_lg_u32 s50, 0
    s_cbranch_scc1 {name}_slow
    s_cmp_ge_u32 s{sW}, {NWV}
    s_cbranch_scc1 {name}_end
    """)
    hdr_lane_addr(a, T, T + 1, sW)
    a(f"""
    ds_read_b64 {vr(R.hdr,2)}, v{T} offset:{L_HDR}
    v_mov_b32 v{T+1}, s63
    ds_read_b128 {vr(T+4,4)}, v{T+1} offset:{L_HDR+32}
    v_lshrrev_b32 v{R.lidx}, 3, v{R.lane}
    v_lshlrev_b32 v{R.lidx}, 4, v{R.lidx}
    s_lshl_b32 s62, s{sW}, 10
    s_add_u32 s62, s62, {L_LIST}
    v_add_u32 v{R.lidx}, s62, v{R.lidx}
    s_waitcnt lgkmcnt(0)
    v_readfirstlane_b32 s52, v{T+4}
    v_readfirstlane_b32 s53, v{T+5}
    v_readfirstlane_b32 s54, v{T+6}
    """)
    hop_loop(a, name, sPad=54, sNB=53, sCnt=52, sGin=32)
    a(f"s_branch {name}_epi")
    a.label(f"{name}_slow")
    slow_hop(a, name, 1024, L_ACC, 45, 24, 28, 32, TID, sW)
    a(f"""
    s_cmp_ge_u32 s{sW}, {NWV}
    s_cbranch_scc1 {name}_end
    """)
    hdr_lane_addr(a, T, T + 1, sW)
    a(f"""
    ds_read_b64 {vr(R.hdr,2)}, v{T} offset:{L_HDR}
    s_waitcnt lgkmcnt(0)
    """)
    a.label(f"{name}_epi")
    hop_epilogue(a, 36, 40)
    a(f"s_branch {name}_end")
    a.label(f"{name}_prep")
    gen_prep(a, name)
    a.label(f"{name}_end")
    a("s_endpgm")
    return dict(name=name, grid=NB_ + 1, block=1024, lds=K2_LDS, vgpr=128, sgpr=80)

HOP_LIST = 0
HOP_ACC = 13312
HOP_LDS = HOP_ACC + 26 * 1024

def gen_hop(a, k):
    name = f'hop{k}_kernel'
    R = HR
    T = R.tmp
    TID = 96
    sW = 3
    a.kernel_begin(name)
    a(f"""
    s_cmp_ge_u32 s2, {NB_}
    s_cbranch_scc1 {name}_end
    s_load_dwordx2 s[10:11], s[0:1], 88
    s_load_dwordx4 s[4:7], s[0:1], 8
    v_mov_b32 v{TID}, v0
    v_and_b32 v0, 63, v0
    v_lshrrev_b32 v{T}, 6, v{TID}
    v_readfirstlane_b32 s{sW}, v{T}
    """)
    hdr_lane_addr(a, T, T + 1, sW)
    a(f"""
    s_mul_i32 s44, s2, {HDR_STRIDE}
    s_add_u32 s44, s44, {HDR_OFF}
    s_mul_i32 s46, s2, {LIST_STRIDE}
    s_add_u32 s46, s46, {LIST_OFF}
    s_lshl_b32 s62, s{sW}, 10
    s_add_u32 s46, s46, s62
    s_add_u32 s47, s44, s63
    s_add_u32 s47, s47, 32
    s_add_u32 m0, s62, {HOP_LIST}
    v_lshlrev_b32 v{T+2}, 4, v{R.lane}
    s_mul_i32 s45, s2, 100
    s_waitcnt lgkmcnt(0)
    s_load_dwordx4 s[52:55], s[10:11], s47
    """)
    srd(a, 12, 10, 11, WS_USED)
    a(f"""
    buffer_load_dwordx4 v{T+2}, s[12:15], s46 offen lds
    buffer_load_dwordx2 {vr(R.hdr,2)}, v{T}, s[12:15], s44 offen
    """)
    srd(a, 32, 10, 11, TBL, G_OFF(k - 1))
    srd(a, 36, 10, 11, TBL, H_OFF(k))
    if k < 7:
        srd(a, 40, 10, 11, TBL, G_OFF(k))
    srd(a, 24, 4, 5, E * 4)
    srd(a, 28, 6, 7, E * 4)
    hop_consts(a)
    a(f"""
    v_lshrrev_b32 v{R.lidx}, 3, v{R.lane}
    v_lshlrev_b32 v{R.lidx}, 4, v{R.lidx}
    s_add_u32 s62, s62, {HOP_LIST}
    v_add_u32 v{R.lidx}, s62, v{R.lidx}
    s_waitcnt lgkmcnt(0)
    s_cmp_lg_u32 s55, 0
    s_cbranch_scc1 {name}_slow
    s_waitcnt vmcnt(1)
    """)
    hop_loop(a, name, sPad=54, sNB=53, sCnt=52, sGin=32)
    a(f"s_branch {name}_epi")
    a.label(f"{name}_slow")
    a("s_waitcnt vmcnt(0)")
    slow_hop(a, name, NWV * 64, HOP_ACC, 45, 24, 28, 32, TID, sW)
    a.label(f"{name}_epi")
    hop_epilogue(a, 36, 40 if k < 7 else None)
    a.label(f"{name}_end")
    a("s_endpgm")
    return dict(name=name, grid=NB_, block=NWV * 64, lds=HOP_LDS, vgpr=100, sgpr=80)

IMG_M = 0; IMG_WV = 8; IMG_AS = 16; NIMG = 18
LOG2E = 1.4426950408889634

def f32hex(x):
    import struct
    return hex(struct.unpack('<I', struct.pack('<f', x))[0])

def gen_prep(a, name):
    LX = 0; LY = 16384; LCX = 32768; LCY = 33024; LRM = 33280; LWR = 33536; LWM = 33792
    a(f"""
    s_load_dwordx4 s[4:7], s[0:1], 32
    s_load_dwordx4 s[8:11], s[0:1], 48
    s_load_dwordx2 s[44:45], s[0:1], 64      ; w_r
    s_load_dwordx2 s[46:47], s[0:1], 88      ; ws
    v_mov_b32 v96, v0                        ; tid
    v_and_b32 v0, 63, v0
    v_lshrrev_b32 v1, 6, v96
    v_readfirstlane_b32 s3, v1
    v_lshrrev_b32 v2, 4, v0                  ; g
    v_and_b32 v3, 15, v0                     ; m
    s_lshr_b32 s48, s3, 2                    ; mt
    s_and_b32 s49, s3, 3                     ; nt
    v_lshlrev_b32 v4, 7, v3
    v_lshl_add_u32 v4, v2, 4, v4             ; m*128 + g*16
    s_lshl_b32 s50, s48, 11
    s_lshl_b32 s51, s49, 11
    v_add_u32 v5, s50, v4
    v_add_u32 v6, s51, v4
    v_lshlrev_b32 v7, 10, v2                 ; g*8*128
    v_lshl_add_u32 v7, v3, 1, v7
    s_lshl_b32 s52, s49, 5
    v_add_u32 v7, s52, v7
    s_waitcnt lgkmcnt(0)
    """)
    srd(a, 12, 4, 5, 8192)
    srd(a, 16, 6, 7, 8192)
    srd(a, 20, 8, 9, 8192)
    srd(a, 24, 10, 11, 8192)
    srd(a, 28, 44, 45, 128)
    srd(a, 32, 46, 47, WS_USED)
    a(f"""
    buffer_load_dwordx4 v[8:11], v5, s[12:15], 0 offen
    buffer_load_dwordx4 v[12:15], v5, s[12:15], 0 offen offset:64
    buffer_load_dwordx4 v[16:19], v6, s[16:19], 0 offen
    buffer_load_dwordx4 v[20:23], v6, s[16:19], 0 offen offset:64
    buffer_load_dwordx4 v[24:27], v5, s[20:23], 0 offen
    buffer_load_dwordx4 v[28:31], v5, s[20:23], 0 offen offset:64
    """)
    for s in range(2):
        a(f"s_mov_b32 s53, {s*32*128}")
        for j in range(8):
            a(f"buffer_load_ushort v{48+8*s+j}, v7, s[24:27], s53 offen offset:{j*128}")
    a(f"""
    v_lshlrev_b32 v40, 1, v0
    buffer_load_ushort v41, v40, s[28:31], 0 offen       ; w_r[lane]
    s_waitcnt vmcnt(0)
    """)
    for q in range(8):
        a(f"v_lshl_or_b32 v{32+q}, v{48+2*q+1}, 16, v{48+2*q}")
    a(f"""
    v_mfma_f32_16x16x32_bf16 v[44:47], v[8:11], v[16:19], 0
    v_mfma_f32_16x16x32_bf16 v[44:47], v[12:15], v[20:23], v[44:47]
    v_mfma_f32_16x16x32_bf16 v[48:51], v[24:27], v[32:35], 0
    v_mfma_f32_16x16x32_bf16 v[48:51], v[28:31], v[36:39], v[48:51]
    v_lshlrev_b32 v42, 10, v2
    v_lshl_add_u32 v42, v3, 2, v42
    s_lshl_b32 s50, s48, 12
    s_lshl_b32 s51, s49, 6
    s_add_u32 s50, s50, s51
    v_add_u32 v42, s50, v42
    """)
    for r in range(4):
        a(f"ds_write_b32 v42, v{44+r} offset:{LX + r*256}")
        a(f"ds_write_b32 v42, v{48+r} offset:{LY + r*256}")
    a(f"""
    v_lshlrev_b32 v41, 16, v41
    v_lshlrev_b32 v40, 2, v0
    s_cmp_lg_u32 s3, 0
    s_cbranch_scc1 {name}_p1
    ds_write_b32 v40, v41 offset:{LWR}
    """)
    a.label(f"{name}_p1")
    a(f"""
    s_waitcnt lgkmcnt(0)
    s_barrier
    s_cmp_gt_u32 s3, 1
    s_cbranch_scc1 {name}_p2
    s_lshl_b32 s50, s3, 14                   ; 0 or 16384
    v_add_u32 v43, s50, v40
    v_mov_b32 v44, 0
    """)
    for blk in range(4):
        for i in range(16):
            a(f"ds_read_b32 v{48+i}, v43 offset:{(blk*16+i)*256}")
        a("s_waitcnt lgkmcnt(0)")
        for i in range(16):
            a(f"v_add_f32 v44, v44, v{48+i}")
    a(f"""
    v_mul_f32 v44, {f32hex(1/64)}, v44
    s_lshl_b32 s50, s3, 8                    ; 0 or 256
    v_add_u32 v43, s50, v40
    ds_write_b32 v43, v44 offset:{LCX}
    """)
    a.label(f"{name}_p2")
    a(f"""
    s_waitcnt lgkmcnt(0)
    s_barrier
    s_cmp_gt_u32 s3, 1
    s_cbranch_scc1 {name}_p3
    s_cmp_eq_u32 s3, 1
    s_cbranch_scc1 {name}_p2b
    v_lshlrev_b32 v43, 8, v0                 ; row*256
    v_mov_b32 v45, 0
    v_mov_b32 v44, 0
    """)
    for q in range(16):
        a(f"""
        ds_read_b128 v[48:51], v43 offset:{LX + q*16}
        ds_read_b128 v[52:55], v45 offset:{LCX + q*16}
        s_waitcnt lgkmcnt(0)
        v_sub_f32 v48, v48, v52
        v_sub_f32 v49, v49, v53
        v_sub_f32 v50, v50, v54
        v_sub_f32 v51, v51, v55
        v_add_f32 v44, v44, v48
        v_add_f32 v44, v44, v49
        v_add_f32 v44, v44, v50
        v_add_f32 v44, v44, v51
        """)
    a(f"""
    v_mul_f32 v44, {f32hex(1/64)}, v44
    ds_write_b32 v40, v44 offset:{LRM}
    s_branch {name}_p3
    """)
    a.label(f"{name}_p2b")
    a(f"""
    v_mov_b32 v45, 0
    v_mov_b32 v44, 0
    """)
    for q in range(16):
        a(f"""
        ds_read_b128 v[48:51], v45 offset:{LWR + q*16}
        s_waitcnt lgkmcnt(0)
        v_add_f32 v44, v44, v48
        v_add_f32 v44, v44, v49
        v_add_f32 v44, v44, v50
        v_add_f32 v44, v44, v51
        """)
    a(f"""
    v_mul_f32 v44, {f32hex(1/64)}, v44
    ds_write_b32 v40, v44 offset:{LWM}
    """)
    a.label(f"{name}_p3")
    a(f"""
    s_waitcnt lgkmcnt(0)
    s_barrier
    s_and_b32 s50, s3, 7
    s_lshr_b32 s51, s50, 1                   ; tau
    s_and_b32 s52, s50, 1                    ; s
    s_lshr_b32 s53, s51, 1                   ; tau>>1
    s_and_b32 s54, s51, 1                    ; tau&1
    v_lshlrev_b32 v43, 4, v0
    s_lshl_b32 s55, s3, 10
    s_add_u32 s55, s55, {W_OFF}
    s_cmp_gt_u32 s3, 7
    s_cbranch_scc1 {name}_p4
    v_lshrrev_b32 v44, 2, v3
    v_lshlrev_b32 v44, 3, v44
    v_and_b32 v45, 3, v3
    v_add_u32 v44, v44, v45
    s_lshl_b32 s56, s53, 5
    s_lshl_b32 s57, s54, 2
    s_add_u32 s56, s56, s57
    v_add_u32 v44, s56, v44                  ; e
    ; d0 = 32 s + 8 g
    v_lshlrev_b32 v45, 3, v2
    s_lshl_b32 s56, s52, 5
    v_add_u32 v45, s56, v45                  ; d0
    v_lshlrev_b32 v46, 8, v44
    v_lshl_add_u32 v46, v45, 2, v46          ; X addr
    v_lshlrev_b32 v47, 2, v45
    v_lshlrev_b32 v44, 2, v44
    ds_read_b128 v[48:51], v46 offset:{LX}
    ds_read_b128 v[52:55], v46 offset:{LX+16}
    ds_read_b128 v[56:59], v47 offset:{LCX}
    ds_read_b128 v[60:63], v47 offset:{LCX+16}
    ds_read_b32 v64, v44 offset:{LRM}
    s_waitcnt lgkmcnt(0)
    """)
    for j in range(8):
        a(f"""
        v_sub_f32 v{48+j}, v{48+j}, v{56+j}
        v_sub_f32 v{48+j}, v{48+j}, v64
        v_mul_f32 v{48+j}, {f32hex(LOG2E/8)}, v{48+j}
        """)
    for q in range(4):
        a(f"v_cvt_pk_bf16_f32 v{68+q}, v{48+2*q}, v{49+2*q}")
    a(f"""
    buffer_store_dwordx4 v[68:71], v43, s[32:35], s55 offen
    s_cmp_gt_u32 s3, 1
    s_cbranch_scc1 {name}_end
    v_lshlrev_b32 v45, 3, v2
    s_lshl_b32 s56, s3, 5
    v_add_u32 v45, s56, v45                  ; f0 = 32 s + 8 g
    v_lshlrev_b32 v45, 2, v45
    v_mov_b32 v47, 0
    ds_read_b128 v[48:51], v45 offset:{LWR}
    ds_read_b128 v[52:55], v45 offset:{LWR+16}
    ds_read_b32 v64, v47 offset:{LWM}
    v_and_b32 v65, 3, v3                     ; m&3
    s_waitcnt lgkmcnt(0)
    """)
    for j in range(8):
        a(f"v_sub_f32 v{48+j}, v{48+j}, v64")
    for q in range(4):
        a(f"""
        v_cvt_pk_bf16_f32 v{68+q}, v{48+2*q}, v{49+2*q}          ; hi
        v_lshlrev_b32 v66, 16, v{68+q}
        v_and_b32 v67, 0xffff0000, v{68+q}
        v_sub_f32 v66, v{48+2*q}, v66
        v_sub_f32 v67, v{49+2*q}, v67
        v_cvt_pk_bf16_f32 v{72+q}, v66, v67                      ; lo
        v_mov_b32 v{76+q}, 0x3f803f80
        v_cmp_eq_u32 vcc, 1, v65
        v_cndmask_b32 v{76+q}, v{76+q}, v{68+q}, vcc
        v_cmp_eq_u32 vcc, 2, v65
        v_cndmask_b32 v{76+q}, v{76+q}, v{72+q}, vcc
        v_cmp_eq_u32 vcc, 3, v65
        v_cndmask_b32 v{76+q}, v{76+q}, 0, vcc
        """)
    a(f"""
    s_lshl_b32 s55, s3, 10
    s_add_u32 s55, s55, {W_OFF + IMG_AS*1024}
    buffer_store_dwordx4 v[76:79], v43, s[32:35], s55 offen
    s_branch {name}_end
    """)
    a.label(f"{name}_p4")
    a(f"""
    v_lshlrev_b32 v44, 1, v3
    s_lshl_b32 s56, s53, 5
    s_add_u32 s56, s56, s54
    v_add_u32 v44, s56, v44                  ; f
    v_lshlrev_b32 v45, 3, v2
    s_lshl_b32 s56, s52, 5
    v_add_u32 v45, s56, v45                  ; d0
    v_lshlrev_b32 v46, 8, v45
    v_lshl_add_u32 v46, v44, 2, v46
    v_lshlrev_b32 v44, 2, v44
    """)
    for j in range(8):
        a(f"ds_read_b32 v{48+j}, v46 offset:{LY + j*256}")
    a(f"""
    ds_read_b32 v64, v44 offset:{LCY}
    s_waitcnt lgkmcnt(0)
    """)
    for j in range(8):
        a(f"v_sub_f32 v{48+j}, v{48+j}, v64")
    for q in range(4):
        a(f"v_cvt_pk_bf16_f32 v{68+q}, v{48+2*q}, v{49+2*q}")
    a(f"""
    buffer_store_dwordx4 v[68:71], v43, s[32:35], s55 offen
    s_branch {name}_end
    """)

class FR:
    lane = 0
    toff = 1
    ooff = 2
    bperm = 3
    T0 = 4; T1 = 8
    N0 = 12; N1 = 16
    MI = 20; WV = 52; AS = 84; PM = 92
    U = 100; Ub = 116; S = 124; TVb = 128; Pb = 136; vmask = 138; O = 140; st = 156
    m = 160
    NV = 180

def allreduce_g(a, x, t, op='v_add_f32'):
    a(f"""
    v_mov_b32 v{t}, v{x}
    v_permlane16_swap_b32 v{t}, v{x}
    {op} v{x}, v{x}, v{t}
    v_mov_b32 v{t}, v{x}
    v_permlane32_swap_b32 v{t}, v{x}
    {op} v{x}, v{x}, v{t}
    """)

def pairreduce(a, x, t, op):
    a(f"""
    v_mov_b32 v{t}, v{x}
    v_permlane16_swap_b32 v{t}, v{x}
    {op} v{x}, v{x}, v{t}
    """)

def final_consts(a, sWS):
    F = FR
    m = F.m
    for i in range(NIMG):
        a(f"s_mov_b32 s40, {W_OFF + i*1024}")
        a(f"buffer_load_dwordx4 {vr(F.MI + 4*i, 4)}, v{m}, {sr(sWS,4)}, s40 offen")
    a(f"""
    v_lshrrev_b32 v{m+1}, 4, v{F.lane}          ; g
    v_bfe_u32 v{m+2}, v{F.lane}, 2, 2           ; idx>>2
    v_and_b32 v{m+3}, 3, v{F.lane}              ; idx&3
    v_cmp_eq_u32 vcc, v{m+1}, v{m+2}
    v_cndmask_b32 v{m+3}, 7, v{m+3}, vcc
    v_mov_b32 v{m+4}, 0x3f80
    v_mov_b32 v{m+5}, 1.0
    """)
    for q in range(4):
        a(f"""
        v_cmp_eq_u32 vcc, {q}, v{m+3}
        v_cndmask_b32 v{F.PM+q}, 0, v{m+4}, vcc
        v_cndmask_b32 v{F.PM+4+q}, 0, v{m+5}, vcc
        """)
    a(f"""
    ; vmask = (g>>1 == n>>3) ? 1.0 : 0
    v_lshrrev_b32 v{m+2}, 5, v{F.lane}
    v_bfe_u32 v{m+3}, v{F.lane}, 3, 1
    v_cmp_eq_u32 vcc, v{m+2}, v{m+3}
    v_cndmask_b32 v{F.vmask}, 0, v{m+5}, vcc
    v_lshlrev_b32 v{F.bperm}, 4, v{m+1}         ; (4g)*4 bytes
    """)

def mf32(a, d, A, B, C):
    c = '0' if C is None else vr(C, 4)
    a(f"v_mfma_f32_16x16x32_bf16 {vr(d,4)}, {vr(A,4)}, {vr(B,4)}, {c}")
def mf16(a, d, A, B, C):
    c = '0' if C is None else vr(C, 4)
    a(f"v_mfma_f32_16x16x16_bf16 {vr(d,4)}, {vr(A,2)}, {vr(B,2)}, {c}")

DBG = False
DBG_OFF = 128 * MB
dbg_names = []
def dump(a, nm, reg, n=1):
    if not DBG: return
    a("s_nop 15")
    for i in range(n):
        idx = len(dbg_names)
        dbg_names.append(f"{nm}{i}")
        a(f"buffer_store_dword v{reg+i}, v{FR.ooff}, s[44:47], s48 offen offset:{(idx*256) & 4095}")
        if (idx & 15) == 15: a("s_add_u32 s48, s48, 4096")
    a("s_nop 4")

def final_pair(a):
    F = FR
    if DBG: a("s_lshl_b32 s48, s9, 8")
    dump(a, 'T0_', F.T0, 4); dump(a, 'T1_', F.T1, 4)
    m = F.m
    T = [F.T0, F.T1]
    rstd, sq, t, mean = m, m + 1, m + 2, m + 3
    rrow = m + 4
    mx, inv = m + 8, m + 9
    arow = m + 10
    pp = m + 14
    outv = m + 19
    EPS = f32hex(1e-5)
    def stats(X, st, dst_rstd):
        mf32(a, st, F.AS, X[0], None)
        mf32(a, st, F.AS + 4, X[1], st)
        a(f"v_dot2_f32_bf16 v{sq}, v{X[0]}, v{X[0]}, 0")
        for i in range(1, 8):
            r = X[i >> 2] + (i & 3)
            a(f"v_dot2_f32_bf16 v{sq}, v{r}, v{r}, v{sq}")
        allreduce_g(a, sq, t)
        a(f"""
        v_mul_f32 v{mean}, {f32hex(1/64)}, v{st}
        v_mul_f32 v{t}, v{mean}, v{mean}
        v_fma_f32 v{sq}, v{sq}, s41, -v{t}
        v_max_f32 v{sq}, 0, v{sq}
        v_add_f32 v{sq}, {EPS}, v{sq}
        v_rsq_f32 v{dst_rstd}, v{sq}
        """)
    stats(T, F.st, rstd)
    dump(a, 'st', F.st, 4); dump(a, 'rstd', rstd); dump(a, 'sq', sq)
    for r in range(4):
        a(f"ds_bpermute_b32 v{rrow+r}, v{F.bperm}, v{rstd} offset:{4*r}")
    for tau in range(4):
        mf32(a, F.U + 4 * tau, F.MI + 8 * tau, F.T0, None)
        mf32(a, F.U + 4 * tau, F.MI + 8 * tau + 4, F.T1, F.U + 4 * tau)
    for i in range(16):
        a(f"v_mul_f32 v{F.U+i}, v{F.U+i}, v{rstd}")
    for i in range(8):
        a(f"v_cvt_pk_bf16_f32 v{F.Ub+i}, v{F.U+2*i}, v{F.U+2*i+1}")
    mf32(a, F.S, F.Ub, F.T0, None)
    mf32(a, F.S, F.Ub + 4, F.T1, F.S)
    dump(a, 'Ub', F.Ub, 8); dump(a, 'S', F.S, 4)
    for tau in range(4):
        mf32(a, F.U + 4 * tau, F.T0, F.WV + 8 * tau, None)
        mf32(a, F.U + 4 * tau, F.T1, F.WV + 8 * tau + 4, F.U + 4 * tau)
    for r in range(4):
        a(f"v_mul_f32 v{F.S+r}, v{F.S+r}, v{rstd}")
    for tau in range(4):
        mf32(a, F.O + 4 * tau, T[tau >> 1], F.PM + 4 * (tau & 1), None)
    a(f"""
    v_max3_f32 v{mx}, v{F.S}, v{F.S+1}, v{F.S+2}
    v_max_f32 v{mx}, v{mx}, v{F.S+3}
    """)
    dump(a, 'TV', F.U, 16)
    for i in range(8):
        a(f"v_cvt_pk_bf16_f32 v{F.TVb+i}, v{F.U+2*i}, v{F.U+2*i+1}")
    for tau in range(4):
        mf32(a, F.U + 4 * tau, F.PM + 4 * (tau & 1), T[tau >> 1], None)
    pairreduce(a, mx, t, 'v_max_f32')
    for r in range(4):
        a(f"v_sub_f32 v{F.S+r}, v{F.S+r}, v{mx}")
    for r in range(4):
        a(f"v_exp_f32 v{F.S+r}, v{F.S+r}")
    a(f"""
    v_add_f32 v{inv}, v{F.S}, v{F.S+1}
    v_add_f32 v{t}, v{F.S+2}, v{F.S+3}
    v_add_f32 v{inv}, v{inv}, v{t}
    """)
    pairreduce(a, inv, t, 'v_add_f32')
    a(f"""
    v_rcp_f32 v{inv}, v{inv}
    v_mul_f32 v{inv}, v{inv}, v{F.vmask}
    s_waitcnt lgkmcnt(0)
    """)
    for r in range(4):
        a(f"v_mul_f32 v{F.S+r}, v{F.S+r}, v{inv}")
        a(f"v_mul_f32 v{F.S+r}, v{F.S+r}, v{rrow+r}")
    dump(a, 'P', F.S, 4); dump(a, 'rrow', rrow, 4)
    a(f"v_cvt_pk_bf16_f32 v{F.Pb}, v{F.S}, v{F.S+1}")
    a(f"v_cvt_pk_bf16_f32 v{F.Pb+1}, v{F.S+2}, v{F.S+3}")
    for tau in range(4):
        mf16(a, F.U + 4 * tau, F.TVb + 2 * tau, F.Pb, F.U + 4 * tau)
    for tau in range(4):
        mf16(a, F.O + 4 * tau, F.Pb, F.TVb + 2 * tau, F.O + 4 * tau)
    for s in range(2):
        for q in range(4):
            a(f"v_cvt_pk_bf16_f32 v{F.Ub+4*s+q}, v{F.U+8*s+q}, v{F.U+8*s+4+q}")
    dump(a, 'OT', F.U, 16); dump(a, 'O', F.O, 16)
    stats([F.Ub, F.Ub + 4], F.st, rstd)
    dump(a, 'st2_', F.st, 4); dump(a, 'rstd2_', rstd)
    lg = mx
    a(f"""
    v_add_f32 v{lg}, v{F.st+1}, v{F.st+2}
    v_mul_f32 v{lg}, v{lg}, v{rstd}
    v_mul_f32 v{lg}, {f32hex(LOG2E)}, v{lg}
    v_max_f32_dpp v{t}, v{lg}, v{lg} quad_perm:[1,0,3,2] row_mask:0xf bank_mask:0xf
    v_max_f32_dpp v{t}, v{t}, v{t} quad_perm:[2,3,0,1] row_mask:0xf bank_mask:0xf
    v_max_f32_dpp v{t}, v{t}, v{t} row_half_mirror row_mask:0xf bank_mask:0xf
    v_sub_f32 v{lg}, v{lg}, v{t}
    v_exp_f32 v{lg}, v{lg}
    v_add_f32_dpp v{t}, v{lg}, v{lg} quad_perm:[1,0,3,2] row_mask:0xf bank_mask:0xf
    v_add_f32_dpp v{t}, v{t}, v{t} quad_perm:[2,3,0,1] row_mask:0xf bank_mask:0xf
    v_add_f32_dpp v{t}, v{t}, v{t} row_half_mirror row_mask:0xf bank_mask:0xf
    v_rcp_f32 v{t}, v{t}
    v_mul_f32 v{lg}, v{lg}, v{t}
    """)
    for r in range(4):
        a(f"ds_bpermute_b32 v{arow+r}, v{F.bperm}, v{lg} offset:{4*r}")
    a("s_waitcnt lgkmcnt(0)")
    dump(a, 'alpha', lg); dump(a, 'arow', arow, 4)
    for tau in range(4):
        a(f"v_mul_f32 v{pp+tau}, v{F.O+4*tau}, v{arow}")
        for r in range(1, 4):
            a(f"v_fmac_f32 v{pp+tau}, v{F.O+4*tau+r}, v{arow+r}")
    a(f"""
    v_permlane16_swap_b32 v{pp}, v{pp+2}
    v_permlane16_swap_b32 v{pp+1}, v{pp+3}
    v_add_f32 v{pp}, v{pp}, v{pp+2}
    v_add_f32 v{pp+1}, v{pp+1}, v{pp+3}
    v_cvt_pk_bf16_f32 v{outv}, v{pp}, v{pp+1}
    """)

FIN_PPW = 4
FIN_WPG = 4
def gen_final(a):
    name = 'fin_kernel'
    F = FR
    m = F.m
    npairs = N // 2
    nwaves = (npairs + FIN_PPW - 1) // FIN_PPW
    nwg = (nwaves + FIN_WPG - 1) // FIN_WPG
    a.kernel_begin(name)
    a(f"""
    s_cmp_ge_u32 s2, {nwg}
    s_cbranch_scc1 {name}_end
    s_load_dwordx2 s[4:5], s[0:1], 88
    s_load_dwordx2 s[6:7], s[0:1], 72
    v_lshrrev_b32 v1, 6, v0
    v_and_b32 v0, 63, v0
    v_readfirstlane_b32 s3, v1
    s_mul_i32 s8, s2, {FIN_WPG}
    s_add_u32 s8, s8, s3
    s_mul_i32 s8, s8, {FIN_PPW}
    s_lshl_b32 s9, s8, 8
    s_mov_b32 s41, {f32hex(1/64)}
    v_lshlrev_b32 v{m}, 4, v{F.lane}
    v_and_b32 v{F.toff}, 7, v{F.lane}
    v_lshlrev_b32 v{F.toff}, 22, v{F.toff}
    v_bfe_u32 v{m+1}, v{F.lane}, 3, 1
    v_lshl_add_u32 v{F.toff}, v{m+1}, 7, v{F.toff}
    v_lshrrev_b32 v{m+1}, 4, v{F.lane}
    v_lshl_add_u32 v{F.toff}, v{m+1}, 4, v{F.toff}
    v_add_u32 v{F.toff}, {H_OFF(0)}, v{F.toff}
    v_lshlrev_b32 v{F.ooff}, 2, v{F.lane}
    s_waitcnt lgkmcnt(0)
    """)
    srd(a, 12, 4, 5, WS_USED)
    srd(a, 16, 6, 7, TBL)
    if DBG: srd(a, 44, 4, 5, 64 * 65536, DBG_OFF)
    a(f"""
    buffer_load_dwordx4 {vr(F.N0,4)}, v{F.toff}, s[12:15], s9 offen
    buffer_load_dwordx4 {vr(F.N1,4)}, v{F.toff}, s[12:15], s9 offen offset:64
    """)
    final_consts(a, 12)
    a("s_mov_b32 s10, 0")
    a.label(f"{name}_loop")
    a("s_waitcnt vmcnt(0)")
    for r in range(4):
        a(f"v_mov_b32 v{F.T0+r}, v{F.N0+r}")
        a(f"v_mov_b32 v{F.T1+r}, v{F.N1+r}")
    a(f"""
    s_add_u32 s11, s9, 256
    buffer_load_dwordx4 {vr(F.N0,4)}, v{F.toff}, s[12:15], s11 offen
    buffer_load_dwordx4 {vr(F.N1,4)}, v{F.toff}, s[12:15], s11 offen offset:64
    """)
    final_pair(a)
    a(f"""
    buffer_store_dword v{m+19}, v{F.ooff}, s[16:19], s9 offen
    s_mov_b32 s9, s11
    s_add_u32 s10, s10, 1
    s_cmp_lt_u32 s10, {FIN_PPW}
    s_cbranch_scc1 {name}_loop
    """)
    a.label(f"{name}_end")
    a("s_endpgm")
    return dict(name=name, grid=nwg, block=FIN_WPG * 64, lds=0, vgpr=F.NV, sgpr=48)

def main():
    global DBG
    out = sys.argv[1] if len(sys.argv) > 1 else 'out.s'
    if 'dbg' in sys.argv[2:]: DBG = True
    body = Asm()
    ks = []
    ks.append(gen_k1(body))
    ks.append(gen_k2(body))
    for k in range(2, 8):
        ks.append(gen_hop(body, k))
    ks.append(gen_final(body))
    hdr = open('gather_scatter__hybrid_graph_tf_nagphormer__graph.s.ref').read().split('\n')
    head = [l for l in hdr if l.startswith(';') and not l.startswith('; @launch')]
    lead = []
    for l in hdr:
        if l.startswith('.amdgcn_target'): break
        if l.startswith('; @launch'): continue
        lead.append(l)
    txt = '\n'.join(lead) + '\n'
    for k in ks:
        txt += f"; @launch kernel={k['name']} grid=({k['grid']},1,1) block=({k['block']},1,1) lds={k['lds']}\n"
    txt += '.amdgcn_target "amdgcn-amd-amdhsa--gfx950"\n.text\n'
    txt += '\n'.join(fix(body.lines)) + '\n'
    txt += '.section .rodata,"a"\n'
    for k in ks:
        txt += Asm.descriptor(k['name'], k['vgpr'], k['sgpr'])
    open(out, 'w').write(txt)
    print("written", out, len(txt), "bytes")
    if DBG: open(out + '.names', 'w').write('\n'.join(dbg_names))
main()
```
